```python
import torch

def _softmax(x, axis=-1):
    return torch.softmax(x, dim=axis)

def _gelu(x):
    return torch.nn.functional.gelu(x, approximate='tanh')

def _silu(x):
    return torch.nn.functional.silu(x)

def _sigmoid(x):
    return torch.sigmoid(x)

def _layernorm(x, axis=-1, eps=1e-05):
    m = x.mean(dim=axis, keepdim=True)
    v = x.var(dim=axis, keepdim=True, unbiased=False)
    return (x - m) / torch.sqrt(v + eps)

def _scatter_add(tgt, idx, src, axis=0):
    return tgt.clone().index_add_(axis, idx, src)

def _segment_sum(src, seg, n):
    out = torch.zeros((n,) + src.shape[1:], dtype=src.dtype)
    return out.index_add_(0, seg, src)

def _pad(x, pw):
    flat = tuple((v for pair in reversed(pw) for v in pair))
    return torch.nn.functional.pad(x, flat)
kernel_name = 'adaLN_cond__ssm_conv_h3__glu_gated_reglu__prompt'

def setup_inputs():

    _w = lambda a: (lambda t: t.to(torch.bfloat16) if t.is_floating_point() else t)(torch.as_tensor(a))

    def _A_setup():
        B, S, D = (1, 2048, 512)
        ks = 4
        return {'q': _w((lambda *s: torch.randn(*s, dtype=torch.bfloat16) * 0.05)(B, S, D)), 'k': _w((lambda *s: torch.randn(*s, dtype=torch.bfloat16) * 0.8)(B, S, D)), 'v': _w((lambda *s: torch.randn(*s, dtype=torch.bfloat16) * 0.8)(B, S, D)), 'shift_k': _w((lambda *s: torch.randn(*s, dtype=torch.bfloat16) * 0.8)(D, ks) * 0.5), 'ssm_k': _w((lambda *s: torch.randn(*s, dtype=torch.bfloat16) * 0.8)(D, S) * (1.0 / S ** 0.5)), 'ssm_D': _w((lambda *s: torch.randn(*s, dtype=torch.bfloat16) * 0.8)(D))}
    _A_in = _A_setup()

    def _B_setup():
        B, S, D, F = (1, 2048, 512, 1792)
        return {'x': _w((lambda *s: torch.randn(*s, dtype=torch.bfloat16) * 0.05)(B, S, D)), 'W_gate': _w((lambda *s: torch.randn(*s, dtype=torch.bfloat16) * 0.8)(D, F) * (2.0 / D) ** 0.5), 'W_up': _w((lambda *s: torch.randn(*s, dtype=torch.bfloat16) * 0.8)(D, F) * (2.0 / D) ** 0.5), 'W_down': _w((lambda *s: torch.randn(*s, dtype=torch.bfloat16) * 0.8)(F, D) * (1.0 / F) ** 0.5)}
    _B_in = _B_setup()
    return {'A_q': _A_in['q'], 'A_k': _A_in['k'], 'A_v': _A_in['v'], 'A_shift_k': _A_in['shift_k'], 'A_ssm_k': _A_in['ssm_k'], 'A_ssm_D': _A_in['ssm_D'], 'B_x': _B_in['x'], 'B_W_gate': _B_in['W_gate'], 'B_W_up': _B_in['W_up'], 'B_W_down': _B_in['W_down'], 'c': _w((lambda *s: torch.randn(*s, dtype=torch.bfloat16) * 0.2)(1, 512) * 8.0), 'w_mod': _w((lambda *s: torch.randn(*s, dtype=torch.bfloat16) * 0.2)(512, 6 * 512) * 512 ** (-0.5) * 8.0)}

def reference(A_q, A_k, A_v, A_shift_k, A_ssm_k, A_ssm_D, B_x, B_W_gate, B_W_up, B_W_down, c, w_mod):

    def _A_ref(q, k, v, shift_k, ssm_k, ssm_D):
        B, S, D = q.shape
        ks = shift_k.shape[-1]
        k_pad = _pad(k, ((0, 0), (ks - 1, 0), (0, 0)))
        k_shift = torch.zeros_like(k)
        for t in range(ks):
            k_shift = k_shift + k_pad[:, t:t + S, :] * shift_k[:, ks - 1 - t][None, None, :]
        kv = k_shift * v
        L = 2 * S
        kv_pad = _pad(kv, ((0, 0), (0, S), (0, 0)))
        kf_pad = _pad(ssm_k, ((0, 0), (0, S)))
        kv_f = (lambda x, axes=(-2, -1): torch.fft.rfft2(x.float(), dim=axes))(kv_pad[:, None, :, :], axes=(1, 2))
        kf_f = (lambda x, axes=(-2, -1): torch.fft.rfft2(x.float(), dim=axes))(kf_pad[:, None, :], axes=(1, 2))
        kf_f = (lambda x, *d: x.permute(*d))(kf_f, 1, 2, 0)
        y_f = kv_f * kf_f[None, :, :, :]
        y = (lambda x, s, axes=(-2, -1): torch.fft.irfft2(x, s=s, dim=axes).to(torch.bfloat16))(y_f, (1, L), axes=(1, 2))[:, 0, :S, :]
        y = y + kv * ssm_D[None, None, :]
        return q * y

    def _B_ref(x, W_gate, W_up, W_down):
        gate = torch.einsum('bsd,df->bsf', x, W_gate)
        up = torch.einsum('bsd,df->bsf', x, W_up)
        gate = gate * (lambda x, dt: x.to(dt))(gate > 0, gate.dtype)
        h = gate * up
        return torch.einsum('bsf,fd->bsd', h, W_down)
    x = A_q
    mod = (_silu(c) @ w_mod).reshape(c.shape[0], 6, 1, -1)
    sa, ca, ga, sb, cb, gb = (mod[:, 0].clone(), mod[:, 1].clone(), mod[:, 2].clone(), mod[:, 3].clone(), mod[:, 4].clone(), mod[:, 5].clone())
    h = _layernorm(x, axis=-1) * (1 + ca) + sa
    x = x + ga * _A_ref(h, A_k, A_v, A_shift_k, A_ssm_k, A_ssm_D)
    h = _layernorm(x, axis=-1) * (1 + cb) + sb
    x = x + gb * _B_ref(h, B_W_gate, B_W_up, B_W_down)
    return x
```

```python
WS_UT  = 0x000000
WS_MOD = 0x200000
WS_YB  = 0x800000
WS_X1  = 0x600000
WS_H2F = 0x800000
WS_HHF = 0xA00000
SZ_2M = 0x200000
SZ_HHF = 2048*1792*2

class Asm:
    def __init__(self):
        self.l = []
    def __call__(self, s=""):
        for line in s.split("\n"):
            self.l.append(line)
    def text(self):
        return "\n".join(self.l) + "\n"

def kernel_head(a, name):
    a(f".globl {name}")
    a(".p2align 8")
    a(f".type {name},@function")
    a(f"{name}:")

def kd(name, vgpr, accum=None, sgpr=102):
    if accum is None:
        accum = (vgpr + 3) // 4 * 4
    return f""".p2align 6
.amdhsa_kernel {name}
  .amdhsa_next_free_vgpr {vgpr}
  .amdhsa_next_free_sgpr {sgpr}
  .amdhsa_accum_offset {accum}
  .amdhsa_group_segment_fixed_size 0
  .amdhsa_kernarg_size 120
  .amdhsa_user_sgpr_count 2
  .amdhsa_user_sgpr_kernarg_segment_ptr 1
  .amdhsa_system_sgpr_workgroup_id_x 1
.end_amdhsa_kernel
"""

def srd(a, d, lo, hi, size, off=None):
    if off is None or off == 0:
        a(f"    s_mov_b32 s{d}, s{lo}")
        a(f"    s_and_b32 s{d+1}, s{hi}, 0xffff")
    else:
        o = off if isinstance(off, str) else hex(off)
        a(f"    s_add_u32 s{d}, s{lo}, {o}")
        a(f"    s_addc_u32 s{d+1}, s{hi}, 0")
        a(f"    s_and_b32 s{d+1}, s{d+1}, 0xffff")
    a(f"    s_mov_b32 s{d+2}, {hex(size)}")
    a(f"    s_mov_b32 s{d+3}, 0x00020000")

import os
DIAG = bool(os.environ.get('DIAG'))
WS_DIAG = 0x2000000
def stamp(a, i):
    if DIAG:
        a(f"    s_memrealtime s[{70+2*i}:{71+2*i}]")
        a("    s_waitcnt lgkmcnt(0)")
def dump_stamps(a, kidx, n, vt=1):
    if not DIAG:
        return
    a("    s_waitcnt vmcnt(0)")
    stamp(a, n)
    srd(a, 92, 10, 11, 0x80000, WS_DIAG + kidx*0x80000)
    a(f"""    v_lshrrev_b32 v{vt}, 6, v0
    v_and_b32 v{vt+1}, 63, v0
    s_lshl_b32 s96, s2, 4
    v_add_u32 v{vt}, s96, v{vt}
    v_lshlrev_b32 v{vt}, 6, v{vt}
    v_cmp_eq_u32 vcc, 0, v{vt+1}
    s_and_saveexec_b64 s[98:99], vcc""")
    for i in range(n+1):
        a(f"    v_mov_b32 v{vt+2}, s{70+2*i}")
        a(f"    buffer_store_dword v{vt+2}, v{vt}, s[92:95], 0 offen offset:{4*i}")
        a("    s_nop 1")
    a("    s_mov_b64 exec, s[98:99]")

def cstamp(a, i):
    if DIAG:
        a(f"    s_memtime s[{70+2*i}:{71+2*i}]")
        a("    s_waitcnt lgkmcnt(0)")
```

```python
from common import *

LAUNCH = "; @launch kernel=prep_kernel grid=(304,1,1) block=(256,1,1) lds=8192"

def gen(a):
    name = "prep_kernel"
    kernel_head(a, name)
    a("""    s_cmp_ge_u32 s2, 304
    s_cbranch_scc1 Lp_done""")
    stamp(a, 0)
    a("""    s_load_dwordx4 s[4:7], s[0:1], 8      ; k, v
    s_load_dwordx2 s[8:9], s[0:1], 24     ; shift_k
    s_load_dwordx4 s[12:15], s[0:1], 80   ; c, w_mod
    s_load_dwordx2 s[10:11], s[0:1], 112  ; ws
    s_mov_b32 s40, 0xffff0000
    s_cmp_ge_u32 s2, 256
    s_cbranch_scc1 Lp_mod
    s_lshr_b32 s41, s2, 3
    s_and_b32 s42, s2, 7
    v_and_b32 v1, 31, v0                  ; cp
    v_lshrrev_b32 v2, 5, v0               ; rg
    v_lshlrev_b32 v2, 3, v2
    s_lshl_b32 s43, s41, 6
    v_add_u32 v2, s43, v2                 ; s0
    s_lshl_b32 s44, s42, 6                ; 64*cb
    v_lshlrev_b32 v3, 1, v1
    v_add_u32 v3, s44, v3                 ; d (even)
    v_lshlrev_b32 v4, 10, v2              ; s0*1024
    v_lshl_add_u32 v4, v3, 1, v4          ; + d*2  -> voff_v
    v_add_u32 v5, 0x1000, v4              ; +4 rows
    v_subrev_u32 v6, 3072, v4
    v_subrev_u32 v7, 2048, v4
    v_subrev_u32 v8, 1024, v4
    v_lshlrev_b32 v9, 3, v3
    s_waitcnt lgkmcnt(0)""")
    srd(a, 16, 4, 5, SZ_2M)
    srd(a, 20, 6, 7, SZ_2M)
    srd(a, 24, 8, 9, 4096)
    srd(a, 28, 10, 11, SZ_2M, WS_UT)
    a("    buffer_load_dwordx4 v[30:33], v9, s[24:27], 0 offen")
    a("    buffer_load_dword v10, v6, s[16:19], 0 offen")
    a("    buffer_load_dword v11, v7, s[16:19], 0 offen")
    a("    buffer_load_dword v12, v8, s[16:19], 0 offen")
    for j in range(4):
        a(f"    buffer_load_dword v{13+j}, v4, s[16:19], 0 offen offset:{j*1024}")
    for j in range(4):
        a(f"    buffer_load_dword v{17+j}, v5, s[16:19], 0 offen offset:{j*1024}")
    for j in range(4):
        a(f"    buffer_load_dword v{21+j}, v4, s[20:23], 0 offen offset:{j*1024}")
    for j in range(4):
        a(f"    buffer_load_dword v{25+j}, v5, s[20:23], 0 offen offset:{j*1024}")
    a("""    v_lshlrev_b32 v34, 12, v3             ; d*4096
    v_lshlrev_b32 v35, 1, v2              ; 2*s0
    v_sub_u32 v34, v34, v35
    v_add_u32 v34, 4080, v34
    s_waitcnt vmcnt(19)""")
    stamp(a, 1)
    a("""    v_lshlrev_b32 v80, 16, v30
    v_lshlrev_b32 v81, 16, v32
    v_and_b32 v82, s40, v30
    v_and_b32 v83, s40, v32
    v_lshlrev_b32 v84, 16, v31
    v_lshlrev_b32 v85, 16, v33
    v_and_b32 v86, s40, v31
    v_and_b32 v87, s40, v33
    s_waitcnt vmcnt(8)""")
    for j in range(11):
        a(f"    v_lshlrev_b32 v{40+2*j}, 16, v{10+j}")
        a(f"    v_and_b32 v{41+2*j}, s40, v{10+j}")
    a("    s_waitcnt vmcnt(0)")
    stamp(a, 2)
    for j in range(8):
        a(f"    v_lshlrev_b32 v{62+2*j}, 16, v{21+j}")
        a(f"    v_and_b32 v{63+2*j}, s40, v{21+j}")
    def rnd(pair, tmp):
        return [f"    v_cvt_pk_bf16_f32 v{tmp}, v{pair}, v{pair+1}",
                f"    v_lshlrev_b32 v{pair}, 16, v{tmp}",
                f"    v_and_b32 v{pair+1}, s40, v{tmp}"]
    for base in (0, 4):
        seqs = []
        for r4 in range(4):
            i = base + r4
            A = 90 + 6*r4; B = A + 2; T = A + 4
            s = []
            s.append(f"    v_pk_mul_f32 v[{A}:{A+1}], v[{40+2*i}:{41+2*i}], v[86:87]")
            s.append(f"    v_pk_mul_f32 v[{B}:{B+1}], v[{42+2*i}:{43+2*i}], v[84:85]")
            s += rnd(A, T)
            s += rnd(B, T+1)
            s.append(f"    v_pk_add_f32 v[{A}:{A+1}], v[{A}:{A+1}], v[{B}:{B+1}]")
            s.append(f"    v_pk_mul_f32 v[{B}:{B+1}], v[{44+2*i}:{45+2*i}], v[82:83]")
            s += rnd(A, T)
            s += rnd(B, T+1)
            s.append(f"    v_pk_add_f32 v[{A}:{A+1}], v[{A}:{A+1}], v[{B}:{B+1}]")
            s.append(f"    v_pk_mul_f32 v[{B}:{B+1}], v[{46+2*i}:{47+2*i}], v[80:81]")
            s += rnd(A, T)
            s += rnd(B, T+1)
            s.append(f"    v_pk_add_f32 v[{A}:{A+1}], v[{A}:{A+1}], v[{B}:{B+1}]")
            s += rnd(A, T)
            s.append(f"    v_pk_mul_f32 v[{62+2*i}:{63+2*i}], v[{A}:{A+1}], v[{62+2*i}:{63+2*i}]")
            seqs.append(s)
        for k in range(len(seqs[0])):
            for s in seqs:
                a(s[k])
    for j in range(4):
        a(f"    v_cvt_pk_bf16_f32 v{116+j}, v{62+2*(7-2*j)}, v{62+2*(6-2*j)}")
        a(f"    v_cvt_pk_bf16_f32 v{120+j}, v{63+2*(7-2*j)}, v{63+2*(6-2*j)}")
    a("""    s_mov_b32 s45, 4096
    buffer_store_dwordx4 v[116:119], v34, s[28:31], 0 offen
    buffer_store_dwordx4 v[120:123], v34, s[28:31], s45 offen""")
    stamp(a, 3)
    dump_stamps(a, 0, 4)
    a("""    s_endpgm
Lp_mod:
    s_sub_u32 s41, s2, 256
    v_and_b32 v1, 7, v0                   ; cq
    v_lshrrev_b32 v2, 3, v0               ; rg (0..31)
    v_lshlrev_b32 v3, 5, v2
    s_mov_b32 s42, 98304                  ; 16*6144
    v_mul_lo_u32 v4, v2, s42
    s_lshl_b32 s43, s41, 7
    v_lshl_add_u32 v4, v1, 4, v4
    v_add_u32 v4, s43, v4                 ; w voffset
    s_waitcnt lgkmcnt(0)""")
    srd(a, 16, 12, 13, 1024)
    srd(a, 20, 14, 15, 512*6144)
    srd(a, 24, 10, 11, 12288, WS_MOD)
    a("    buffer_load_dwordx4 v[10:13], v3, s[16:19], 0 offen")
    a("    buffer_load_dwordx4 v[14:17], v3, s[16:19], 0 offen offset:16")
    for i in range(16):
        a(f"    s_mov_b32 s44, {i*6144}")
        a(f"    buffer_load_dwordx4 v[{20+4*i}:{23+4*i}], v4, s[20:23], s44 offen")
    a("    s_mov_b32 s45, 0xbfb8aa3b             ; -log2(e)")
    a("    s_waitcnt vmcnt(16)")
    stamp(a, 1)
    for e in range(8):
        a(f"    v_lshlrev_b32 v{84+2*e}, 16, v{10+e}")
        a(f"    v_and_b32 v{85+2*e}, s40, v{10+e}")
    for i in range(16):
        a(f"    v_mul_f32 v{100+i}, s45, v{84+i}")
    for i in range(16):
        a(f"    v_exp_f32 v{100+i}, v{100+i}")
    a("    s_nop 0")
    for i in range(16):
        a(f"    v_add_f32 v{100+i}, 1.0, v{100+i}")
    for i in range(16):
        a(f"    v_rcp_f32 v{100+i}, v{100+i}")
    a("    s_nop 0")
    for i in range(16):
        a(f"    v_mul_f32 v{84+i}, v{84+i}, v{100+i}")
    for e in range(8):
        a(f"    v_cvt_pk_bf16_f32 v{100+e}, v{84+2*e}, v{85+2*e}")
    for e in range(8):
        a(f"    v_lshlrev_b32 v{84+2*e}, 16, v{100+e}")
        a(f"    v_and_b32 v{85+2*e}, s40, v{100+e}")
    for e in range(8):
        a(f"    v_mov_b32 v{108+e}, 0")
    for i in range(16):
        a(f"    s_waitcnt vmcnt({15-i})")
        for e in range(4):
            a(f"    v_lshlrev_b32 v{100+2*e}, 16, v{20+4*i+e}")
            a(f"    v_and_b32 v{101+2*e}, s40, v{20+4*i+e}")
        for e in range(8):
            a(f"    v_fmac_f32 v{108+e}, v{100+e}, v{84+i}")
    stamp(a, 2)
    a("""    v_lshlrev_b32 v5, 8, v2
    v_lshl_add_u32 v5, v1, 5, v5
    ds_write_b128 v5, v[108:111]
    ds_write_b128 v5, v[112:115] offset:16
    v_lshrrev_b32 v6, 6, v0
    s_nop 0
    v_readfirstlane_b32 s46, v6
    s_waitcnt lgkmcnt(0)
    s_barrier
    s_cmp_lg_u32 s46, 0
    s_cbranch_scc1 Lp_done
    v_lshlrev_b32 v6, 2, v0""")
    for r in range(32):
        a(f"    ds_read_b32 v{20+r}, v6 offset:{r*256}")
        if r == 15:
            a("    s_waitcnt lgkmcnt(8)")
    a("    s_waitcnt lgkmcnt(0)")
    for r in range(16):
        a(f"    v_add_f32 v{20+r}, v{20+r}, v{36+r}")
    for r in range(8):
        a(f"    v_add_f32 v{20+r}, v{20+r}, v{28+r}")
    for r in range(4):
        a(f"    v_add_f32 v{20+r}, v{20+r}, v{24+r}")
    a("""    v_add_f32 v20, v20, v22
    v_add_f32 v21, v21, v23
    v_add_f32 v20, v20, v21
    v_cvt_pk_bf16_f32 v20, v20, v20
    v_lshlrev_b32 v20, 16, v20
    s_lshr_b32 s47, s41, 3
    s_cmp_eq_u32 s47, 1
    s_cselect_b32 s48, 1, 0
    s_cmp_eq_u32 s47, 4
    s_cselect_b32 s48, 1, s48
    s_cmp_eq_u32 s48, 0
    s_cbranch_scc1 Lp_noone
    v_add_f32 v20, 1.0, v20
    v_cvt_pk_bf16_f32 v20, v20, v20
    v_lshlrev_b32 v20, 16, v20
Lp_noone:
    s_lshl_b32 s43, s41, 8
    v_add_u32 v6, s43, v6
    buffer_store_dword v20, v6, s[24:27], 0 offen""")
    stamp(a, 3)
    dump_stamps(a, 0, 4)
    a("""Lp_done:
    s_endpgm""")
    return kd(name, 124)
```

```python
import sys, importlib
sys.path.insert(0, 'gen')
from common import *
import k0
mods = [k0]
for n in ('k1', 'k2', 'k3', 'k4'):
    try:
        mods.append(importlib.import_module(n))
    except ModuleNotFoundError:
        pass

def build(path):
    a = Asm()
    hdr = []
    kds = []
    body = Asm()
    for m in mods:
        hdr.append(m.LAUNCH)
        kds.append(m.gen(body))
    for h in hdr:
        a(h)
    a('.amdgcn_target "amdgcn-amd-amdhsa--gfx950"')
    a(".text")
    a(body.text())
    a('.section .rodata,"a"')
    for k in kds:
        a(k)
    open(path, "w").write(a.text())

if __name__ == "__main__":
    out = sys.argv[1] if len(sys.argv) > 1 else "adaLN_cond__ssm_conv_h3__glu_gated_reglu__prompt.s"
    build(out)
```
